```python
import torch

def _softmax(x, axis=-1):
    return torch.softmax(x, dim=axis)
def _gelu(x):
    return torch.nn.functional.gelu(x, approximate="tanh")
def _silu(x):
    return torch.nn.functional.silu(x)
def _sigmoid(x):
    return torch.sigmoid(x)
def _layernorm(x, axis=-1, eps=1e-5):
    m = x.mean(dim=axis, keepdim=True)
    v = x.var(dim=axis, keepdim=True, unbiased=False)
    return (x - m) / torch.sqrt(v + eps)
def _scatter_add(tgt, idx, src, axis=0):
    return tgt.clone().index_add_(axis, idx, src)
def _segment_sum(src, seg, n):
    out = torch.zeros((n,) + src.shape[1:], dtype=src.dtype)
    return out.index_add_(0, seg, src)
def _pad(x, pw):
    flat = tuple(v for pair in reversed(pw) for v in pair)
    return torch.nn.functional.pad(x, flat)

kernel_name = 'sequential_preLN__compressed_kv_cla__swiglu_ffn__decode'

def setup_inputs():

    _w = (lambda a: (lambda t: t.to(torch.bfloat16) if t.is_floating_point() else t)(torch.as_tensor(a)))
    def _A_setup():
        B, H, Sq, Sk, D, M = 2, 32, 1, 4096, 128, 576
        Dc = 4 * D
        return {
            "x": _w((lambda *s: torch.randn(*s, dtype=torch.bfloat16) * 0.05)(B, Sq, M)),
            "c_kv": _w((lambda *s: torch.randn(*s, dtype=torch.bfloat16) * 0.4)(B, Sk, Dc)),
            "w_q": _w((lambda *s: torch.randn(*s, dtype=torch.bfloat16) * 3.2)(M, H, D) * (M ** -0.5)),
            "w_uk": _w((lambda *s: torch.randn(*s, dtype=torch.bfloat16) * 3.2)(Dc, H, D) * (Dc ** -0.5)),
            "w_uv": _w((lambda *s: torch.randn(*s, dtype=torch.bfloat16) * 0.4)(Dc, H, D) * (Dc ** -0.5)),
            "w_o": _w((lambda *s: torch.randn(*s, dtype=torch.bfloat16) * 0.4)(H, D, M) * ((H * D) ** -0.5)),
        }
    _A_in = _A_setup()

    def _B_setup():
        B, S, D, F = 2, 1, 576, 4608
        return {
            "x": _w((lambda *s: torch.randn(*s, dtype=torch.bfloat16) * 0.05)(B, S, D)),
            "w_gate": _w((lambda *s: torch.randn(*s, dtype=torch.bfloat16) * 0.05)(D, F)),
            "w_up": _w((lambda *s: torch.randn(*s, dtype=torch.bfloat16) * 0.05)(D, F)),
            "w_down": _w((lambda *s: torch.randn(*s, dtype=torch.bfloat16) * 0.05)(F, D)),
        }
    _B_in = _B_setup()

    return {
        "A_x": _A_in["x"],
        "A_c_kv": _A_in["c_kv"],
        "A_w_q": _A_in["w_q"],
        "A_w_uk": _A_in["w_uk"],
        "A_w_uv": _A_in["w_uv"],
        "A_w_o": _A_in["w_o"],
        "B_x": _B_in["x"],
        "B_w_gate": _B_in["w_gate"],
        "B_w_up": _B_in["w_up"],
        "B_w_down": _B_in["w_down"],
    }

def reference(A_x, A_c_kv, A_w_q, A_w_uk, A_w_uv, A_w_o, B_x, B_w_gate, B_w_up, B_w_down):
    def _A_ref(x, c_kv, w_q, w_uk, w_uv, w_o):
        B, Sq, M = x.shape[0], x.shape[1], x.shape[2]
        Sk = c_kv.shape[1]
        H, D = w_q.shape[1], w_q.shape[2]
        q = torch.einsum("bqm,mhd->bhqd", x, w_q)
        k = torch.einsum("bkc,chd->bhkd", c_kv, w_uk)
        v = torch.einsum("bkc,chd->bhkd", c_kv, w_uv)
        scores = torch.einsum("bhqd,bhkd->bhqk", q, k) * (D ** -0.5)
        off = Sk - Sq
        qi = torch.arange(Sq)[:, None]
        kj = torch.arange(Sk)[None, :]
        cmask = kj <= (qi + off)
        scores = torch.where(cmask[None, None], scores, -1e9)
        p = _softmax(scores, axis=-1)
        ctx = torch.einsum("bhqk,bhkd->bhqd", p, v)
        return torch.einsum("bhqd,hdm->bqm", ctx, w_o)

    def _B_ref(x, w_gate, w_up, w_down):
        g = _silu(x @ w_gate)
        u = x @ w_up
        return (g * u) @ w_down

    x = A_x
    h = x + _A_ref(_layernorm(x, axis=-1), A_c_kv, A_w_q, A_w_uk, A_w_uv, A_w_o)
    h2 = h + _B_ref(_layernorm(h, axis=-1), B_w_gate, B_w_up, B_w_down)
    return h2
```

```python
class A:
    def __init__(self):
        self.lines = []
        self.uid = 0
    def __call__(self, s):
        for l in s.strip("\n").split("\n"):
            self.lines.append("  " + l.strip() if not l.strip().endswith(":") else l.strip())
    def label(self, base):
        self.uid += 1
        return f"L_{base}_{self.uid}"
    def text(self):
        return "\n".join(self.lines) + "\n"
    def nop(self, n):
        while n > 0:
            k = min(n, 16)
            self(f"s_nop {k-1}")
            n -= k

def vr(a, n=1):
    return f"v{a}" if n == 1 else f"v[{a}:{a+n-1}]"
def sr(a, n=1):
    return f"s{a}" if n == 1 else f"s[{a}:{a+n-1}]"
```

```python
import sys, argparse
from core import *

KN = "sequential_preLN__compressed_kv_cla__swiglu_ffn__decode"

EPOCH = 0
E1G = 0x010000; E1L = 0x090000
E2  = 0x110000
E3S = 0x130000
E4G = 0x140000; E4L = 0x1C0000
E5  = 0x240000
E5BG = 0x290000; E5BL = 0x2B0000; E5B_STRIDE = 0x2400
E7  = 0x2D0000
E3  = 0x500000
DBG = 0x1000000
STAMP_OFF = 0x8000000

L_CKV = 32768
L_RED = 0
L_QA  = 8192
QA_RS = 1040
L_RED2 = L_QA
L_P   = 16512
L_XD  = 20608
L_MISC = 25216
L_QB  = L_MISC
L_MX  = L_MISC + 512
L_LS  = L_MISC + 1024
L_XD2 = L_MISC + 1536
LDS_BYTES = 160 * 1024

S_X, S_CKV, S_WQ, S_WUK, S_WUV, S_WO, S_BX, S_WG, S_WU, S_WD, S_OUT, S_DBG, S_WS = [4 + 2 * i for i in range(13)]
S_EP = 30
s_x, s_r, s_h, s_j, s_w = 32, 33, 34, 35, 36
s_b, s_qd, s_g, s_sp = 37, 38, 39, 44
S_TAG = 40
S_T0 = 46
S_SAVE = 60
S_CNT = 62
S_ACC = 64
v_tid, v_lane, v_g, v_c = 0, 1, 2, 3
V_MASK = 4
V_WQ = 16; V_WUK = 28; V_WUV = 44; V_WO = 52; V_WGU = 68; V_WD = 140
V_T = 160

class Gen:
    def __init__(self, opt):
        self.o = opt
        self.a = A()
        self.nstamp = 0

    def stamp(self, idx):
        if not self.o.stamps: return
        a = self.a
        a(f"s_memrealtime s[{70+2*idx}:{71+2*idx}]")
        self.nstamp = max(self.nstamp, idx + 1)

    def flush_stamps(self):
        if not self.o.stamps: return
        a = self.a
        lab = a.label("nost")
        a("s_waitcnt lgkmcnt(0)")
        a(f"s_cmp_lg_u32 s{s_w}, 0\ns_cbranch_scc1 {lab}")
        a(f"s_mul_i32 s{S_T0}, s2, 128\ns_add_u32 s{S_T0}, s{S_T0}, {STAMP_OFF}\nv_mov_b32 v{V_T}, s{S_T0}")
        a(f"v_cmp_eq_u32 vcc, 0, v{v_lane}\ns_and_saveexec_b64 s[{S_SAVE}:{S_SAVE+1}], vcc")
        for i in range(self.nstamp):
            a(f"v_mov_b32 v{V_T+2}, s{70+2*i}\nv_mov_b32 v{V_T+3}, s{71+2*i}\nglobal_store_dwordx2 v{V_T}, v[{V_T+2}:{V_T+3}], s[{S_WS}:{S_WS+1}] offset:{8*i}\ns_nop 1")
        a(f"s_mov_b64 exec, s[{S_SAVE}:{S_SAVE+1}]")
        a(f"{lab}:")

    def tag(self, e):
        self.a(f"s_add_u32 s{S_TAG}, s{S_EP}, {e}\ns_addc_u32 s{S_TAG+1}, s{S_EP+1}, 0")

    def publish(self, vaddr, vdata, regionG, regionL=None):
        a = self.a
        a(f"v_mov_b32 v{vdata+2}, s{S_TAG}\nv_mov_b32 v{vdata+3}, s{S_TAG+1}")
        if regionL is not None and self.o.local:
            a(f"v_add_u32 v{V_T+90}, {regionL}, v{vaddr}")
            a(f"global_store_dwordx4 v{V_T+90}, v[{vdata}:{vdata+3}], s[{S_WS}:{S_WS+1}]")
        a(f"v_add_u32 v{V_T+91}, {regionG}, v{vaddr}")
        a(f"global_store_dwordx4 v{V_T+91}, v[{vdata}:{vdata+3}], s[{S_WS}:{S_WS+1}] sc1")

    def gather(self, vaddrs, vdst, regionG, regionL=None, pre=0, inter=2):
        a = self.a
        n = len(vaddrs)
        uselocal = regionL is not None and self.o.local
        base = regionL if uselocal else regionG
        for va in vaddrs:
            a(f"v_add_u32 v{va}, {base}, v{va}")
        if pre: a(f"s_sleep {pre}")
        lp = a.label("poll"); ok = a.label("pok"); nofb = a.label("nofb")
        a(f"s_mov_b32 s{S_CNT}, 0")
        a(f"{lp}:")
        for i, va in enumerate(vaddrs):
            a(f"global_load_dwordx4 v[{vdst+4*i}:{vdst+4*i+3}], v{va}, s[{S_WS}:{S_WS+1}] sc1")
        a("s_waitcnt vmcnt(0)")
        for i in range(n):
            a(f"v_cmp_ne_u64 vcc, s[{S_TAG}:{S_TAG+1}], v[{vdst+4*i+2}:{vdst+4*i+3}]")
            if i == 0: a(f"s_mov_b64 s[{S_ACC}:{S_ACC+1}], vcc")
            else: a(f"s_or_b64 s[{S_ACC}:{S_ACC+1}], s[{S_ACC}:{S_ACC+1}], vcc")
        a(f"s_cmp_eq_u64 s[{S_ACC}:{S_ACC+1}], 0\ns_cbranch_scc1 {ok}")
        a(f"s_add_u32 s{S_CNT}, s{S_CNT}, 1")
        if uselocal:
            a(f"s_cmp_lg_u32 s{S_CNT}, {self.o.fallback}\ns_cbranch_scc1 {nofb}")
            for va in vaddrs:
                a(f"v_add_u32 v{va}, {regionG - regionL}, v{va}")
            a(f"{nofb}:")
        a(f"s_cmp_gt_u32 s{S_CNT}, {self.o.timeout}\ns_cbranch_scc1 L_abort")
        if inter: a(f"s_sleep {inter}")
        a(f"s_branch {lp}")
        a(f"{ok}:")

    def allreduce16(self, v, tmp, op="v_add_f32"):
        a = self.a
        for rot in (8, 4, 2, 1):
            a("s_nop 1")
            a(f"{op}_dpp v{v}, v{v}, v{v} row_ror:{rot} row_mask:0xf bank_mask:0xf")
    def xrow16(self, v, tmp, op="v_add_f32"):
        a = self.a
        a(f"v_mov_b32 v{tmp}, v{v}\ns_nop 1\nv_permlane16_swap_b32 v{tmp}, v{v}\ns_nop 1\n{op} v{v}, v{v}, v{tmp}")
    def xrow32(self, v, tmp, op="v_add_f32"):
        a = self.a
        a(f"v_mov_b32 v{tmp}, v{v}\ns_nop 1\nv_permlane32_swap_b32 v{tmp}, v{v}\ns_nop 1\n{op} v{v}, v{v}, v{tmp}")

    def dbg_dump(self, vreg, n, slot, cond_wave=None):
        if not self.o.debug: return
        a = self.a
        a(f"s_mul_i32 s{S_T0}, s2, {512*n*4}\ns_add_u32 s{S_T0}, s{S_T0}, {DBG + slot * 0x200000}")
        a(f"v_mul_u32_u24 v{V_T+92}, {n*4}, v{v_tid}\nv_add_u32 v{V_T+92}, s{S_T0}, v{V_T+92}")
        for i in range(n):
            a(f"global_store_dword v{V_T+92}, v{vreg+i}, s[{S_WS}:{S_WS+1}] offset:{4*i}")

    def abuild(self, vdup, vout):
        for rr in range(4):
            self.a(f"v_and_b32 v{vout+rr}, v{vdup}, v{V_MASK+rr}")

    def build(self):
        o = self.o; a = self.a
        T = V_T
        a(f"s_cmp_ge_u32 s2, 256\ns_cbranch_scc1 L_end")
        a("s_load_dwordx16 s[4:19], s[0:1], 0\ns_load_dwordx8 s[20:27], s[0:1], 64\ns_load_dwordx2 s[28:29], s[0:1], 96")
        self.stamp(0)
        a(f"v_and_b32 v{v_lane}, 63, v0\nv_lshrrev_b32 v{v_g}, 4, v{v_lane}\nv_and_b32 v{v_c}, 15, v{v_lane}\nv_lshrrev_b32 v{T}, 6, v0")
        a(f"s_and_b32 s{s_x}, s2, 7\ns_lshr_b32 s{s_r}, s2, 3")
        a(f"v_readfirstlane_b32 s{s_w}, v{T}")
        a(f"s_lshr_b32 s{s_g}, s{s_r}, 3\ns_and_b32 s{s_j}, s{s_r}, 7\ns_lshl_b32 s{s_h}, s{s_x}, 2\ns_add_u32 s{s_h}, s{s_h}, s{s_g}")
        a(f"s_lshr_b32 s{s_b}, s{s_x}, 2\ns_and_b32 s{s_qd}, s{s_x}, 3\ns_mov_b32 s{s_sp}, s{s_j}")
        a(f"v_and_b32 v{T}, 7, v{v_c}\nv_lshrrev_b32 v{T}, 1, v{T}\nv_and_b32 v{T+1}, 1, v{v_c}")
        a(f"v_cmp_eq_u32 vcc, 1, v{T+1}\nv_mov_b32 v{T+2}, 0xffff\nv_mov_b32 v{T+3}, 0xffff0000\ns_nop 1\nv_cndmask_b32 v{T+2}, v{T+2}, v{T+3}, vcc")
        for rr in range(4):
            a(f"v_cmp_eq_u32 vcc, {rr}, v{T}\ns_nop 1\nv_cndmask_b32 v{V_MASK+rr}, 0, v{T+2}, vcc")
        a("s_waitcnt lgkmcnt(0)")
        a(f"s_load_dwordx2 s[{S_EP}:{S_EP+1}], s[{S_WS}:{S_WS+1}], 0")
        XC = T + 8
        XE = T + 20
        a(f"v_lshlrev_b32 v{T}, 4, v{v_lane}")
        a(f"global_load_dwordx4 v[{XC}:{XC+3}], v{T}, s[{S_X}:{S_X+1}]")
        a(f"global_load_dwordx4 v[{XC+4}:{XC+7}], v{T}, s[{S_X}:{S_X+1}] offset:1024")
        a(f"v_min_u32 v{T+1}, 15, v{v_lane}\nv_lshlrev_b32 v{T+1}, 4, v{T+1}")
        a(f"global_load_dwordx4 v[{XC+8}:{XC+11}], v{T+1}, s[{S_X}:{S_X+1}] offset:2048")
        a(f"s_mul_i32 s{S_T0}, s{s_j}, 72\ns_lshl_b32 s{S_T0+1}, s{s_w}, 2\ns_add_u32 s{S_T0}, s{S_T0}, s{S_T0+1}")
        a(f"v_add_u32 v{T+2}, s{S_T0}, v{v_g}")
        a(f"v_lshrrev_b32 v{T+3}, 3, v{v_c}\nv_mul_u32_u24 v{T+3}, 576, v{T+3}\nv_add_u32 v{T+3}, v{T+3}, v{T+2}\nv_lshlrev_b32 v{T+3}, 1, v{T+3}")
        a(f"global_load_ushort v{XE}, v{T+3}, s[{S_X}:{S_X+1}]\nglobal_load_ushort v{XE+1}, v{T+3}, s[{S_X}:{S_X+1}] offset:64")
        a(f"v_lshlrev_b32 v{T+4}, 13, v{T+2}\ns_lshl_b32 s{S_T0+1}, s{s_h}, 8\nv_lshl_add_u32 v{T+4}, v{v_c}, 4, v{T+4}\nv_add_u32 v{T+4}, s{S_T0+1}, v{T+4}")
        a(f"global_load_dwordx4 v[{V_WQ}:{V_WQ+3}], v{T+4}, s[{S_WQ}:{S_WQ+1}] nt")
        a(f"v_add_u32 v{T+5}, {32*8192}, v{T+4}")
        a(f"global_load_dwordx4 v[{V_WQ+4}:{V_WQ+7}], v{T+5}, s[{S_WQ}:{S_WQ+1}] nt")
        l3 = a.label("no3")
        a(f"s_cmp_ge_u32 s{s_w}, 2\ns_cbranch_scc1 {l3}")
        a(f"global_load_ushort v{XE+2}, v{T+3}, s[{S_X}:{S_X+1}] offset:128")
        a(f"v_add_u32 v{T+5}, {64*8192}, v{T+4}")
        a(f"global_load_dwordx4 v[{V_WQ+8}:{V_WQ+11}], v{T+5}, s[{S_WQ}:{S_WQ+1}] nt")
        a(f"{l3}:")
        l4 = a.label("nouk")
        a(f"s_cmp_ge_u32 s{s_w}, 4\ns_cbranch_scc1 {l4}")
        a(f"s_lshl_b32 s{S_T0}, s{s_j}, 6\ns_lshl_b32 s{S_T0+1}, s{s_w}, 4\ns_add_u32 s{S_T0}, s{S_T0}, s{S_T0+1}\nv_add_u32 v{T+5}, s{S_T0}, v{v_c}\nv_lshlrev_b32 v{T+5}, 13, v{T+5}")
        a(f"s_lshl_b32 s{S_T0+1}, s{s_h}, 8\nv_lshl_add_u32 v{T+5}, v{v_g}, 4, v{T+5}\nv_add_u32 v{T+5}, s{S_T0+1}, v{T+5}")
        for kk in range(4):
            a(f"global_load_dwordx4 v[{V_WUK+4*kk}:{V_WUK+4*kk+3}], v{T+5}, s[{S_WUK}:{S_WUK+1}] offset:{64*kk} nt")
        a(f"{l4}:")
        lw1 = a.label("w"); lw2 = a.label("w"); lw3 = a.label("w")
        a(f"s_cmp_ge_u32 s{s_w}, 4\ns_cbranch_scc1 {lw1}\ns_cmp_ge_u32 s{s_w}, 2\ns_cbranch_scc1 {lw2}")
        a(f"s_waitcnt vmcnt(10)\ns_branch {lw3}\n{lw2}:\ns_waitcnt vmcnt(8)\ns_branch {lw3}\n{lw1}:\ns_waitcnt vmcnt(4)\n{lw3}:")
        F = T + 24
        for i in range(12):
            a(f"v_lshlrev_b32 v{F+2*i}, 16, v{XC+i}\nv_and_b32 v{F+2*i+1}, 0xffff0000, v{XC+i}")
        S0 = T + 48
        for t in range(3):
            a(f"v_add_f32 v{S0+t}, v{F+8*t}, v{F+8*t+1}")
            for e in range(2, 8):
                a(f"v_add_f32 v{S0+t}, v{S0+t}, v{F+8*t+e}")
        A0, A1 = T + 52, T + 53
        a(f"v_cmp_gt_u32 s[{S_T0}:{S_T0+1}], 8, v{v_lane}\nv_cmp_gt_u32 s[{S_T0+2}:{S_T0+3}], 16, v{v_lane}\ns_nop 1")
        def split(src, a0, a1):
            a(f"v_cndmask_b32 v{T+54}, 0, v{src+1}, s[{S_T0}:{S_T0+1}]\nv_add_f32 v{a0}, v{src}, v{T+54}")
            a(f"v_cndmask_b32 v{T+54}, v{src+1}, 0, s[{S_T0}:{S_T0+1}]\nv_cndmask_b32 v{T+55}, 0, v{src+2}, s[{S_T0+2}:{S_T0+3}]\nv_add_f32 v{a1}, v{T+54}, v{T+55}")
        split(S0, A0, A1)
        for v in (A0, A1):
            self.allreduce16(v, T + 54); self.xrow16(v, T + 54); self.xrow32(v, T + 54)
        a(f"v_mul_f32 v{A0}, {1.0/576:.9e}, v{A0}".replace("e-0", "e-") + f"\nv_mul_f32 v{A1}, {1.0/576:.9e}, v{A1}".replace("e-0", "e-"))
        a(f"v_cndmask_b32 v{T+56}, v{A1}, v{A0}, s[{S_T0}:{S_T0+1}]")
        for t, mv in ((0, A0), (1, T + 56), (2, A1)):
            for e in range(8):
                a(f"v_sub_f32 v{F+8*t+e}, v{F+8*t+e}, v{mv}")
            a(f"v_mul_f32 v{S0+t}, v{F+8*t}, v{F+8*t}")
            for e in range(1, 8):
                a(f"v_fmac_f32 v{S0+t}, v{F+8*t+e}, v{F+8*t+e}")
        V0, V1 = T + 57, T + 58
        split(S0, V0, V1)
        for v in (V0, V1):
            self.allreduce16(v, T + 54); self.xrow16(v, T + 54); self.xrow32(v, T + 54)
        a(f"v_mov_b32 v{T+54}, 0x3727c5ac")
        for v in (V0, V1):
            a(f"v_fmac_f32 v{T+54}, {1.0/576:.9e}, v{v}".replace("e-0", "e-")) if False else None
            a(f"v_mul_f32 v{v}, {1.0/576:.9e}, v{v}".replace("e-0", "e-") + f"\nv_add_f32 v{v}, v{v}, v{T+54}\nv_rsq_f32 v{v}, v{v}")
        MEAN, RSTD = T + 59, T + 60
        a(f"v_cmp_gt_u32 vcc, 8, v{v_c}\ns_nop 1\nv_cndmask_b32 v{MEAN}, v{A1}, v{A0}, vcc\nv_cndmask_b32 v{RSTD}, v{V1}, v{V0}, vcc")
        ACC = 12
        AOP = T + 68
        for i in range(4): a(f"v_mov_b32 v{ACC+i}, 0")
        a("s_waitcnt vmcnt(4)" if False else "")
        lq1 = a.label("q"); lq2 = a.label("q")
        a(f"s_cmp_ge_u32 s{s_w}, 4\ns_cbranch_scc1 {lq1}\ns_waitcnt vmcnt(4)\ns_branch {lq2}\n{lq1}:\ns_waitcnt vmcnt(0)\n{lq2}:")
        def qstep(t):
            a(f"v_lshlrev_b32 v{T+62}, 16, v{XE+t}\nv_sub_f32 v{T+62}, v{T+62}, v{MEAN}\nv_mul_f32 v{T+62}, v{T+62}, v{RSTD}\nv_cvt_pk_bf16_f32 v{T+62}, v{T+62}, v{T+62}")
            self.abuild(T + 62, AOP + 4 * t)
            a("s_nop 1")
            a(f"v_mfma_f32_16x16x32_bf16 v[{ACC}:{ACC+3}], v[{AOP+4*t}:{AOP+4*t+3}], v[{V_WQ+4*t}:{V_WQ+4*t+3}], v[{ACC}:{ACC+3}]")
        qstep(0); qstep(1)
        l5 = a.label("no3b")
        a(f"s_cmp_ge_u32 s{s_w}, 2\ns_cbranch_scc1 {l5}")
        qstep(2)
        a(f"{l5}:")
        VRED = 8
        a(f"v_lshrrev_b32 v{VRED}, 1, v{v_g}\nv_lshlrev_b32 v{VRED}, 7, v{VRED}\nv_lshl_add_u32 v{VRED}, v{v_c}, 3, v{VRED}\nv_and_b32 v{T+62}, 1, v{v_g}\nv_lshl_add_u32 v{VRED}, v{T+62}, 2, v{VRED}\nv_lshlrev_b32 v{VRED}, 2, v{VRED}")
        a(f"s_lshl_b32 s{S_T0}, s{s_w}, 10\nv_add_u32 v{T+62}, s{S_T0}, v{VRED}")
        a.nop(8)
        a(f"ds_write_b128 v{T+62}, v[{ACC}:{ACC+3}] offset:{L_RED}")
        a("s_waitcnt lgkmcnt(0)\ns_barrier")
        self.stamp(1)
        def red8_pairs(buf, nthreads_wavecount, stride, dst):
            a(f"v_lshlrev_b32 v{T}, 3, v{v_tid}")
            for wv in range(8):
                a(f"ds_read_b64 v[{T+2+2*wv}:{T+3+2*wv}], v{T} offset:{buf + wv*stride}")
            a("s_waitcnt lgkmcnt(0)")
            a(f"v_add_f32 v{dst}, v{T+2}, v{T+4}\nv_add_f32 v{dst+1}, v{T+3}, v{T+5}")
            for wv in range(2, 8):
                a(f"v_add_f32 v{dst}, v{dst}, v{T+2+2*wv}\nv_add_f32 v{dst+1}, v{dst+1}, v{T+3+2*wv}")
        le1 = a.label("e1skip")
        a(f"s_cmp_ge_u32 s{s_w}, 2\ns_cbranch_scc1 {le1}")
        red8_pairs(L_RED, 2, 1024, T + 20)
        self.tag(1)
        a(f"s_lshl_b32 s{S_T0}, s{s_h}, 3\ns_add_u32 s{S_T0}, s{S_T0}, s{s_j}\ns_lshl_b32 s{S_T0}, s{S_T0}, 11\nv_lshlrev_b32 v{T+24}, 4, v{v_tid}\nv_add_u32 v{T+24}, s{S_T0}, v{T+24}")
        self.publish(T + 24, T + 20, E1G, E1L)
        a(f"s_lshl_b32 s{S_T0}, s{s_h}, 14\nv_lshlrev_b32 v{T+24}, 4, v{v_tid}\nv_add_u32 v{T+24}, s{S_T0}, v{T+24}")
        for jj in range(1, 8):
            a(f"v_add_u32 v{T+24+jj}, {2048*jj}, v{T+24}")
        self.gather([T + 24 + jj for jj in range(8)], T + 32, E1G, E1L, pre=o.pre1, inter=1)
        a(f"v_add_f32 v{T+20}, v{T+32}, v{T+36}\nv_add_f32 v{T+21}, v{T+33}, v{T+37}")
        for jj in range(2, 8):
            a(f"v_add_f32 v{T+20}, v{T+20}, v{T+32+4*jj}\nv_add_f32 v{T+21}, v{T+21}, v{T+33+4*jj}")
        self.dbg_dump(T + 20, 2, 0)
        a(f"v_cvt_pk_bf16_f32 v{T+22}, v{T+20}, v{T+21}\nv_lshlrev_b32 v{T+23}, 2, v{v_tid}")
        a(f"ds_write_b32 v{T+23}, v{T+22} offset:{L_QB}")
        a("s_waitcnt lgkmcnt(0)")
        a(f"{le1}:")
        a("s_barrier")
        self.stamp(2)
        lqa = a.label("qaskip")
        a(f"s_cmp_ge_u32 s{s_w}, 4\ns_cbranch_scc1 {lqa}")
        a(f"v_and_b32 v{T}, 1, v{v_c}\nv_lshlrev_b32 v{T}, 8, v{T}\nv_lshl_add_u32 v{T}, v{v_g}, 4, v{T}")
        for kk in range(4):
            a(f"ds_read_b128 v[{T+4+4*kk}:{T+7+4*kk}], v{T} offset:{L_QB + 64*kk}")
        for i in range(4): a(f"v_mov_b32 v{ACC+i}, 0")
        a("s_waitcnt vmcnt(0) lgkmcnt(0)")
        for kk in range(4):
            a(f"v_mfma_f32_16x16x32_bf16 v[{ACC}:{ACC+3}], v[{V_WUK+4*kk}:{V_WUK+4*kk+3}], v[{T+4+4*kk}:{T+7+4*kk}], v[{ACC}:{ACC+3}]")
        self.tag(2)
        a(f"s_lshl_b32 s{S_T0}, s{s_h}, 7\ns_lshl_b32 s{S_T0+1}, s{s_j}, 4\ns_add_u32 s{S_T0}, s{S_T0}, s{S_T0+1}\ns_lshl_b32 s{S_T0+1}, s{s_w}, 2\ns_add_u32 s{S_T0}, s{S_T0}, s{S_T0+1}")
        a(f"v_lshlrev_b32 v{T+24}, 12, v{v_c}\nv_add_u32 v{T+24}, v{T+24}, v{v_g}\nv_add_u32 v{T+24}, s{S_T0}, v{T+24}\nv_lshlrev_b32 v{T+24}, 4, v{T+24}")
        a(f"s_mov_b32 s{S_T0+2}, 0x{self.qscale_bits():08x}")
        a.nop(4)
        for i in range(4): a(f"v_mul_f32 v{ACC+i}, s{S_T0+2}, v{ACC+i}")
        a(f"v_cvt_pk_bf16_f32 v{T+20}, v{ACC}, v{ACC+1}\nv_cvt_pk_bf16_f32 v{T+21}, v{ACC+2}, v{ACC+3}")
        a(f"v_cmp_gt_u32 vcc, 2, v{v_c}\ns_and_saveexec_b64 s[{S_SAVE}:{S_SAVE+1}], vcc")
        self.publish(T + 24, T + 20, E2)
        a(f"s_mov_b64 exec, s[{S_SAVE}:{S_SAVE+1}]")
        a(f"{lqa}:")
        self.stamp(3)
        a(f"s_lshl_b32 s{S_T0}, s{s_b}, 12\ns_lshl_b32 s{S_T0+1}, s{s_qd}, 10\ns_add_u32 s{S_T0}, s{S_T0}, s{S_T0+1}\ns_lshl_b32 s{S_T0+1}, s{s_sp}, 7\ns_add_u32 s{S_T0}, s{S_T0}, s{S_T0+1}\ns_lshl_b32 s{S_T0+1}, s{s_w}, 4\ns_add_u32 s{S_T0}, s{S_T0}, s{S_T0+1}\ns_lshl_b32 s{S_T0}, s{S_T0}, 10")
        a(f"s_add_u32 s{S_T0+2}, s{S_CKV}, s{S_T0}\ns_addc_u32 s{S_T0+3}, s{S_CKV+1}, 0")
        a(f"s_lshl_b32 s{S_T0+4}, s{s_w}, 14")
        a(f"v_lshlrev_b32 v{T}, 4, v{v_lane}")
        for f8 in range(8):
            a(f"v_xor_b32 v{T+1+f8}, {f8*2*16}, v{T}")
        for row in range(16):
            a(f"s_add_u32 m0, s{S_T0+4}, {L_CKV + row*1024}")
            if row % 4 == 0 and row > 0:
                a(f"s_add_u32 s{S_T0+2}, s{S_T0+2}, 4096\ns_addc_u32 s{S_T0+3}, s{S_T0+3}, 0")
            else:
                a("s_nop 0")
            if row % 4:
                a(f"s_sub_u32 m0, m0, {(row%4)*1024}\ns_nop 0")
            a(f"global_load_lds_dwordx4 v{T+1+(row&7)}, s[{S_T0+2}:{S_T0+3}] offset:{(row%4)*1024} nt")
        self.tag(2)
        a(f"s_lshl_b32 s{S_T0}, s{s_b}, 5\ns_lshl_b32 s{S_T0+1}, s{s_g}, 3\ns_add_u32 s{S_T0}, s{S_T0}, s{S_T0+1}\ns_lshl_b32 s{S_T0}, s{S_T0}, 11")
        a(f"v_lshlrev_b32 v{T+24}, 4, v{v_tid}\nv_add_u32 v{T+24}, s{S_T0}, v{T+24}\nv_add_u32 v{T+25}, 8192, v{T+24}")
        self.gather([T + 24, T + 25], T + 32, E2, None, pre=o.pre2, inter=2)
        a(f"v_lshrrev_b32 v{T+26}, 7, v{v_tid}\nv_mul_u32_u24 v{T+26}, {QA_RS}, v{T+26}\nv_and_b32 v{T+27}, 127, v{v_tid}\nv_lshl_add_u32 v{T+26}, v{T+27}, 3, v{T+26}")
        a(f"ds_write_b64 v{T+26}, v[{T+32}:{T+33}] offset:{L_QA}\nds_write_b64 v{T+26}, v[{T+36}:{T+37}] offset:{L_QA + 4*QA_RS}")
        a("s_waitcnt lgkmcnt(0)\ns_barrier")
        self.stamp(4)
        a(f"s_lshl_b32 s{S_T0}, s{s_w}, 14\ns_add_u32 s{S_T0}, s{S_T0}, {L_CKV}\nv_lshlrev_b32 v{T}, 10, v{v_c}\nv_add_u32 v{T}, s{S_T0}, v{T}")
        a(f"v_and_b32 v{T+1}, 7, v{v_c}\nv_lshlrev_b32 v{T+1}, 1, v{T+1}")
        for k4 in range(4):
            a(f"v_add_u32 v{T+2}, {4*k4}, v{v_g}\nv_xor_b32 v{T+2}, v{T+2}, v{T+1}\nv_lshl_add_u32 v{T+4+k4}, v{T+2}, 4, v{T}")
        a(f"v_and_b32 v{T+2}, 7, v{v_c}\nv_mul_u32_u24 v{T+8}, {QA_RS}, v{T+2}\nv_lshl_add_u32 v{T+8}, v{v_g}, 4, v{T+8}")
        for i in range(4): a(f"v_mov_b32 v{ACC+i}, 0")
        AR = T + 16; BR = T + 48
        for half in range(2):
            for k in range(8):
                kk = 8 * half + k
                a(f"ds_read_b128 v[{AR+4*k}:{AR+4*k+3}], v{T+4+(kk&3)} offset:{(kk>>2)*256}")
                a(f"ds_read_b128 v[{BR+4*k}:{BR+4*k+3}], v{T+8} offset:{L_QA + kk*64}")
            for k in range(8):
                a(f"s_waitcnt lgkmcnt({14-2*k})")
                a(f"v_mfma_f32_16x16x32_bf16 v[{ACC}:{ACC+3}], v[{AR+4*k}:{AR+4*k+3}], v[{BR+4*k}:{BR+4*k+3}], v[{ACC}:{ACC+3}]")
        a.nop(8)
        MXV = 9
        a(f"v_max_f32 v{MXV}, v{ACC}, v{ACC+1}\nv_max3_f32 v{MXV}, v{MXV}, v{ACC+2}, v{ACC+3}")
        self.xrow16(MXV, T + 10, "v_max_f32"); self.xrow32(MXV, T + 10, "v_max_f32")
        a(f"v_lshlrev_b32 v{T+10}, 5, v{v_c}\ns_lshl_b32 s{S_T0}, s{s_w}, 2\nv_add_u32 v{T+11}, s{S_T0}, v{T+10}")
        a(f"ds_write_b32 v{T+11}, v{MXV} offset:{L_MX}")
        a("s_waitcnt lgkmcnt(0)\ns_barrier")
        a(f"ds_read_b128 v[{T+16}:{T+19}], v{T+10} offset:{L_MX}\nds_read_b128 v[{T+20}:{T+23}], v{T+10} offset:{L_MX+16}")
        a("s_waitcnt lgkmcnt(0)")
        a(f"v_max3_f32 v{MXV}, v{T+16}, v{T+17}, v{T+18}\nv_max3_f32 v{MXV}, v{MXV}, v{T+19}, v{T+20}\nv_max3_f32 v{MXV}, v{MXV}, v{T+21}, v{T+22}\nv_max_f32 v{MXV}, v{MXV}, v{T+23}")
        for i in range(4):
            a(f"v_sub_f32 v{ACC+i}, v{ACC+i}, v{MXV}\nv_exp_f32 v{ACC+i}, v{ACC+i}")
        a("s_nop 0")
        a(f"v_cvt_pk_bf16_f32 v{T+12}, v{ACC}, v{ACC+1}\nv_cvt_pk_bf16_f32 v{T+13}, v{ACC+2}, v{ACC+3}")
        a(f"v_add_f32 v{T+14}, v{ACC}, v{ACC+1}\nv_add_f32 v{T+15}, v{ACC+2}, v{ACC+3}\nv_add_f32 v{T+14}, v{T+14}, v{T+15}")
        a(f"s_lshr_b32 s{S_T0}, s{s_w}, 1\ns_lshl_b32 s{S_T0}, s{S_T0}, 10\ns_and_b32 s{S_T0+1}, s{s_w}, 1\ns_lshl_b32 s{S_T0+1}, s{S_T0+1}, 3\ns_add_u32 s{S_T0}, s{S_T0}, s{S_T0+1}")
        a(f"v_lshlrev_b32 v{T+24}, 4, v{v_lane}\nv_add_u32 v{T+25}, s{S_T0}, v{T+24}")
        a(f"ds_write_b64 v{T+25}, v[{T+12}:{T+13}] offset:{L_P}")
        self.xrow16(T + 14, T + 15); self.xrow32(T + 14, T + 15)
        a(f"ds_write_b32 v{T+11}, v{T+14} offset:{L_LS}")
        a("s_waitcnt lgkmcnt(0)\ns_barrier")
        self.stamp(5)
        a(f"v_lshrrev_b32 v{T}, 2, v{v_c}\nv_lshl_add_u32 v{T}, v{v_g}, 2, v{T}")
        a(f"v_and_b32 v{T+1}, 7, v{T}\nv_lshlrev_b32 v{T+1}, 1, v{T+1}")
        a(f"v_bfe_u32 v{T+2}, v{v_c}, 1, 1\ns_and_b32 s{S_T0}, s{s_w}, 1\ns_lshl_b32 s{S_T0}, s{S_T0}, 3\nv_add_u32 v{T+2}, s{S_T0}, v{T+2}")
        a(f"v_lshlrev_b32 v{T+3}, 10, v{T}\nv_and_b32 v{T+4}, 1, v{v_c}\nv_lshl_add_u32 v{T+3}, v{T+4}, 3, v{T+3}\ns_lshr_b32 s{S_T0}, s{s_w}, 1\ns_lshl_b32 s{S_T0}, s{S_T0}, 8\ns_add_u32 s{S_T0}, s{S_T0}, {L_CKV}\nv_add_u32 v{T+3}, s{S_T0}, v{T+3}")
        TA = T + 16
        for tt in range(4):
            a(f"v_add_u32 v{T+4}, {2*tt}, v{T+2}\nv_xor_b32 v{T+4}, v{T+4}, v{T+1}\nv_lshl_add_u32 v{TA+tt}, v{T+4}, 4, v{T+3}\nv_add_u32 v{TA+4+tt}, 65536, v{TA+tt}")
        OACC = T + 24
        for i in range(16): a(f"v_mov_b32 v{OACC+i}, 0")
        PB = T + 40
        for ks in range(4):
            a(f"ds_read_b128 v[{PB+4*ks}:{PB+4*ks+3}], v{T+24-T+V_T-24+0 if False else T+10} offset:0" if False else "")
        a(f"v_lshlrev_b32 v{T+10}, 4, v{v_lane}")
        for ks in range(4):
            a(f"ds_read_b128 v[{PB+4*ks}:{PB+4*ks+3}], v{T+10} offset:{L_P + ks*1024}")
        CA = T + 56
        def pv_reads(ks):
            buf = CA + 16 * (ks & 1)
            for tt in range(4):
                ad = TA + tt + (4 if ks >= 2 else 0)
                ro = (32 * (ks & 1)) * 1024
                a(f"ds_read_b64_tr_b16 v[{buf+4*tt}:{buf+4*tt+1}], v{ad} offset:{ro}")
                a(f"ds_read_b64_tr_b16 v[{buf+4*tt+2}:{buf+4*tt+3}], v{ad} offset:{ro + 16*1024}")
        pv_reads(0)
        for ks in range(4):
            if ks < 3:
                pv_reads(ks + 1)
                a("s_waitcnt lgkmcnt(8)")
            else:
                a("s_waitcnt lgkmcnt(0)")
            buf = CA + 16 * (ks & 1)
            for tt in range(4):
                a(f"v_mfma_f32_16x16x32_bf16 v[{OACC+4*tt}:{OACC+4*tt+3}], v[{buf+4*tt}:{buf+4*tt+3}], v[{PB+4*ks}:{PB+4*ks+3}], v[{OACC+4*tt}:{OACC+4*tt+3}]")
        self.tag(3)
        a(f"s_lshl_b32 s{S_T0}, s{s_g}, 6\ns_add_u32 s{S_T0}, s{S_T0}, s{s_w}\ns_lshl_b32 s{S_T0}, s{S_T0}, 1\ns_add_u32 s{S_T0}, s{S_T0}, s{s_b}\ns_lshl_b32 s{S_T0}, s{S_T0}, 5\ns_lshl_b32 s{S_T0+1}, s{s_qd}, 3\ns_add_u32 s{S_T0+1}, s{S_T0+1}, s{s_sp}\ns_add_u32 s{S_T0}, s{S_T0}, s{S_T0+1}\ns_lshl_b32 s{S_T0}, s{S_T0}, 8")
        a(f"v_lshlrev_b32 v{T}, 17, v{v_c}\nv_lshl_add_u32 v{T}, v{v_g}, 4, v{T}\nv_add_u32 v{T}, s{S_T0}, v{T}")
        a.nop(6)
        a(f"v_cmp_gt_u32 vcc, 8, v{v_c}\ns_and_saveexec_b64 s[{S_SAVE}:{S_SAVE+1}], vcc")
        for tt in range(4):
            a(f"v_cvt_pk_bf16_f32 v{T+4+4*tt}, v{OACC+4*tt}, v{OACC+4*tt+1}\nv_cvt_pk_bf16_f32 v{T+5+4*tt}, v{OACC+4*tt+2}, v{OACC+4*tt+3}")
            a(f"v_add_u32 v{T+1}, {64*tt}, v{T}")
            self.publish(T + 1, T + 4 + 4 * tt, E3)
        a(f"s_mov_b64 exec, s[{S_SAVE}:{S_SAVE+1}]")
        lst = a.label("nostat")
        a(f"s_cmp_lg_u32 s{s_w}, 0\ns_cbranch_scc1 {lst}")
        a(f"v_lshlrev_b32 v{T+10}, 5, v{v_c}")
        a(f"ds_read_b128 v[{T+16}:{T+19}], v{T+10} offset:{L_LS}\nds_read_b128 v[{T+20}:{T+23}], v{T+10} offset:{L_LS+16}\ns_waitcnt lgkmcnt(0)")
        a(f"v_add_f32 v{T+21}, v{T+21}, v{T+16}\nv_add_f32 v{T+17}, v{T+17}, v{T+18}\nv_add_f32 v{T+19}, v{T+19}, v{T+20}\nv_add_f32 v{T+22}, v{T+22}, v{T+23}\nv_add_f32 v{T+21}, v{T+21}, v{T+17}\nv_add_f32 v{T+19}, v{T+19}, v{T+22}\nv_add_f32 v{T+21}, v{T+21}, v{T+19}")
        a(f"v_mov_b32 v{T+20}, v{MXV}")
        a(f"s_lshl_b32 s{S_T0}, s{s_g}, 4\ns_add_u32 s{S_T0}, s{S_T0}, s{s_b}\ns_lshl_b32 s{S_T0}, s{S_T0}, 5\ns_add_u32 s{S_T0}, s{S_T0}, s{S_T0+1}\ns_lshl_b32 s{S_T0}, s{S_T0}, 4")
        a(f"v_lshlrev_b32 v{T}, 10, v{v_lane}\nv_add_u32 v{T}, s{S_T0}, v{T}")
        a(f"v_cmp_gt_u32 vcc, 8, v{v_lane}\ns_and_saveexec_b64 s[{S_SAVE}:{S_SAVE+1}], vcc")
        self.publish(T, T + 20, E3S)
        a(f"s_mov_b64 exec, s[{S_SAVE}:{S_SAVE+1}]")
        a(f"{lst}:")
        self.stamp(6)
        a(f"s_lshl_b32 s{S_T0}, s{s_j}, 6\ns_lshl_b32 s{S_T0+1}, s{s_w}, 3\ns_add_u32 s{S_T0}, s{S_T0}, s{S_T0+1}\nv_add_u32 v{T}, s{S_T0}, v{v_g}\nv_lshlrev_b32 v{T}, 13, v{T}\ns_lshl_b32 s{S_T0+1}, s{s_h}, 8\nv_lshl_add_u32 v{T}, v{v_c}, 4, v{T}\nv_add_u32 v{T}, s{S_T0+1}, v{T}")
        a(f"global_load_dwordx4 v[{V_WUV}:{V_WUV+3}], v{T}, s[{S_WUV}:{S_WUV+1}] nt\nv_add_u32 v{T}, {4*8192}, v{T}\nglobal_load_dwordx4 v[{V_WUV+4}:{V_WUV+7}], v{T}, s[{S_WUV}:{S_WUV+1}] nt")
        a(f"s_lshl_b32 s{S_T0}, s{s_h}, 7\ns_lshl_b32 s{S_T0+1}, s{s_w}, 4\ns_add_u32 s{S_T0}, s{S_T0}, s{S_T0+1}\nv_add_u32 v{T}, s{S_T0}, v{v_g}\nv_mul_u32_u24 v{T}, 1152, v{T}\ns_mul_i32 s{S_T0+1}, s{s_j}, 144\nv_min_u32 v{T+1}, 8, v{v_c}\nv_lshl_add_u32 v{T}, v{T+1}, 4, v{T}\nv_add_u32 v{T}, s{S_T0+1}, v{T}")
        for t in range(4):
            a(f"global_load_dwordx4 v[{V_WO+4*t}:{V_WO+4*t+3}], v{T}, s[{S_WO}:{S_WO+1}] nt")
            if t < 3: a(f"v_add_u32 v{T}, {4*1152}, v{T}")
        if o.ffn_early:
            self.ffn_loads(0, o.ffn_early)
        a(f"s_lshl_b32 s{S_T0}, s{s_h}, 3\ns_add_u32 s{S_T0}, s{S_T0}, s{s_j}\ns_lshl_b32 s{S_T0}, s{S_T0}, 6\ns_lshl_b32 s{S_T0+1}, s{s_w}, 2\ns_add_u32 s{S_T0}, s{S_T0}, s{S_T0+1}\ns_lshl_b32 s{S_T0}, s{S_T0}, 8")
        a(f"v_lshlrev_b32 v{T+24}, 4, v{v_lane}\nv_add_u32 v{T+24}, s{S_T0}, v{T+24}\nv_add_u32 v{T+25}, 8192, v{T+24}")
        a(f"s_lshl_b32 s{S_T0}, s{s_h}, 10\ns_add_u32 s{S_T0}, s{S_T0}, {(E3S - E3) & 0xffffffff}\nv_lshlrev_b32 v{T+26}, 4, v{v_lane}\nv_add_u32 v{T+26}, s{S_T0}, v{T+26}")
        self.gather([T + 24, T + 25, T + 26], T + 32, E3, None, pre=o.pre3, inter=2)
        self.stamp(7)
        MM, EE = T + 44, T + 45
        a(f"v_mov_b32 v{MM}, v{T+40}")
        self.allreduce16(MM, T + 46, "v_max_f32"); self.xrow16(MM, T + 46, "v_max_f32")
        a(f"v_sub_f32 v{EE}, v{T+40}, v{MM}\nv_exp_f32 v{EE}, v{EE}\ns_nop 0\nv_mul_f32 v{T+47}, v{EE}, v{T+41}")
        self.allreduce16(T + 47, T + 46); self.xrow16(T + 47, T + 46)
        a(f"v_rcp_f32 v{T+47}, v{T+47}\ns_nop 0\nv_mul_f32 v{EE}, v{EE}, v{T+47}")
        a(f"s_lshl_b32 s{S_T0}, s{s_w}, 4\nv_lshlrev_b32 v{T+46}, 2, v{v_g}\nv_add_u32 v{T+46}, s{S_T0}, v{T+46}\nv_add_u32 v{T+47}, 128, v{T+46}")
        a(f"ds_bpermute_b32 v{T+48}, v{T+46}, v{EE}\nds_bpermute_b32 v{T+49}, v{T+47}, v{EE}\ns_waitcnt lgkmcnt(0)")
        OV = T + 50
        for b in range(2):
            src = T + 32 + 4 * b
            a(f"v_lshlrev_b32 v{OV+4*b}, 16, v{src}\nv_and_b32 v{OV+4*b+1}, 0xffff0000, v{src}\nv_lshlrev_b32 v{OV+4*b+2}, 16, v{src+1}\nv_and_b32 v{OV+4*b+3}, 0xffff0000, v{src+1}")
            for e in range(4): a(f"v_mul_f32 v{OV+4*b+e}, v{OV+4*b+e}, v{T+48+b}")
        for e in range(8):
            self.xrow16(OV + e, T + 46); self.xrow32(OV + e, T + 46)
        a(f"v_cmp_eq_u32 vcc, 1, v{v_g}\ns_nop 1")
        for e in range(4): a(f"v_cndmask_b32 v{OV+e}, v{OV+e}, v{OV+4+e}, vcc")
        a(f"s_lshl_b32 s{S_T0}, s{s_w}, 9\nv_lshlrev_b32 v{T+46}, 4, v{v_lane}\nv_add_u32 v{T+46}, s{S_T0}, v{T+46}")
        a(f"v_cmp_gt_u32 vcc, 32, v{v_lane}\ns_and_saveexec_b64 s[{S_SAVE}:{S_SAVE+1}], vcc")
        a(f"ds_write_b128 v{T+46}, v[{OV}:{OV+3}] offset:{L_RED}")
        a(f"s_mov_b64 exec, s[{S_SAVE}:{S_SAVE+1}]")
        a("s_waitcnt lgkmcnt(0)\ns_barrier")
        a(f"v_lshrrev_b32 v{T}, 3, v{v_c}\nv_lshlrev_b32 v{T}, 6, v{T}\ns_lshl_b32 s{S_T0}, s{s_w}, 3\nv_add_u32 v{T}, s{S_T0}, v{T}\nv_add_u32 v{T}, v{T}, v{v_g}\nv_lshlrev_b32 v{T}, 2, v{T}")
        for wv in range(8):
            a(f"ds_read_b32 v{T+2+wv}, v{T} offset:{L_RED + wv*512}\nds_read_b32 v{T+10+wv}, v{T} offset:{L_RED + wv*512 + 16}")
        for i in range(4): a(f"v_mov_b32 v{ACC+i}, 0")
        a("s_waitcnt lgkmcnt(0)")
        for t in range(2):
            bb = T + 2 + 8 * t
            a(f"v_add_f32 v{bb}, v{bb}, v{bb+1}\nv_add_f32 v{bb+2}, v{bb+2}, v{bb+3}\nv_add_f32 v{bb+4}, v{bb+4}, v{bb+5}\nv_add_f32 v{bb+6}, v{bb+6}, v{bb+7}\nv_add_f32 v{bb}, v{bb}, v{bb+2}\nv_add_f32 v{bb+4}, v{bb+4}, v{bb+6}\nv_add_f32 v{bb}, v{bb}, v{bb+4}")
            a(f"v_cvt_pk_bf16_f32 v{bb}, v{bb}, v{bb}")
            self.abuild(bb, AOP + 4 * t)
        a("s_nop 1")
        for t in range(2):
            a(f"v_mfma_f32_16x16x32_bf16 v[{ACC}:{ACC+3}], v[{AOP+4*t}:{AOP+4*t+3}], v[{V_WUV+4*t}:{V_WUV+4*t+3}], v[{ACC}:{ACC+3}]")
        a(f"s_lshl_b32 s{S_T0}, s{s_w}, 10\nv_add_u32 v{T+62}, s{S_T0}, v{VRED}")
        a.nop(8)
        a(f"ds_write_b128 v{T+62}, v[{ACC}:{ACC+3}] offset:{L_RED2}")
        a("s_waitcnt lgkmcnt(0)\ns_barrier")
        le4 = a.label("e4skip")
        a(f"s_cmp_ge_u32 s{s_w}, 2\ns_cbranch_scc1 {le4}")
        red8_pairs(L_RED2, 2, 1024, T + 20)
        self.tag(4)
        a(f"s_lshl_b32 s{S_T0}, s{s_h}, 3\ns_add_u32 s{S_T0}, s{S_T0}, s{s_j}\ns_lshl_b32 s{S_T0}, s{S_T0}, 11\nv_lshlrev_b32 v{T+24}, 4, v{v_tid}\nv_add_u32 v{T+24}, s{S_T0}, v{T+24}")
        self.publish(T + 24, T + 20, E4G, E4L)
        self.stamp(8)
        a(f"s_lshl_b32 s{S_T0}, s{s_h}, 14\nv_lshlrev_b32 v{T+24}, 4, v{v_tid}\nv_add_u32 v{T+24}, s{S_T0}, v{T+24}")
        for jj in range(1, 8):
            a(f"v_add_u32 v{T+24+jj}, {2048*jj}, v{T+24}")
        self.gather([T + 24 + jj for jj in range(8)], T + 32, E4G, E4L, pre=o.pre4, inter=1)
        a(f"v_add_f32 v{T+20}, v{T+32}, v{T+36}\nv_add_f32 v{T+21}, v{T+33}, v{T+37}")
        for jj in range(2, 8):
            a(f"v_add_f32 v{T+20}, v{T+20}, v{T+32+4*jj}\nv_add_f32 v{T+21}, v{T+21}, v{T+33+4*jj}")
        self.dbg_dump(T + 20, 2, 1)
        a(f"v_cvt_pk_bf16_f32 v{T+22}, v{T+20}, v{T+20}\nv_cvt_pk_bf16_f32 v{T+23}, v{T+21}, v{T+21}")
        a(f"v_lshrrev_b32 v{T+24}, 6, v{v_tid}\nv_lshlrev_b32 v{T+24}, 2, v{T+24}\nv_and_b32 v{T+25}, 1, v{v_tid}\nv_lshl_add_u32 v{T+24}, v{T+25}, 1, v{T+24}\nv_lshlrev_b32 v{T+24}, 5, v{T+24}\nv_bfe_u32 v{T+25}, v{v_tid}, 1, 5\nv_add_u32 v{T+24}, v{T+24}, v{T+25}\nv_lshlrev_b32 v{T+24}, 2, v{T+24}")
        a(f"ds_write_b32 v{T+24}, v{T+22} offset:{L_XD}\nds_write_b32 v{T+24}, v{T+23} offset:{L_XD+128}")
        a("s_waitcnt lgkmcnt(0)")
        a(f"{le4}:")
        a("s_barrier")
        self.stamp(9)
        a(f"v_lshrrev_b32 v{T}, 3, v{v_c}\nv_lshl_add_u32 v{T}, v{T}, 2, v{v_g}\nv_lshlrev_b32 v{T}, 7, v{T}\ns_lshl_b32 s{S_T0}, s{s_w}, 4\nv_add_u32 v{T}, s{S_T0}, v{T}")
        a(f"ds_read_b128 v[{T+4}:{T+7}], v{T} offset:{L_XD}")
        for i in range(4): a(f"v_mov_b32 v{ACC+i}, 0")
        a("s_waitcnt lgkmcnt(0)")
        AO2 = T + 68
        for t in range(4):
            self.abuild(T + 4 + t, AO2 + 4 * t)
        a("s_waitcnt vmcnt(0)" if not o.ffn_early else "s_nop 0")
        a("s_nop 1")
        for t in range(4):
            a(f"v_mfma_f32_16x16x32_bf16 v[{ACC}:{ACC+3}], v[{AO2+4*t}:{AO2+4*t+3}], v[{V_WO+4*t}:{V_WO+4*t+3}], v[{ACC}:{ACC+3}]")
        a(f"s_lshl_b32 s{S_T0}, s{s_w}, 10\nv_add_u32 v{T+62}, s{S_T0}, v{VRED}")
        a.nop(8)
        a(f"ds_write_b128 v{T+62}, v[{ACC}:{ACC+3}] offset:{L_RED}")
        a("s_waitcnt lgkmcnt(0)\ns_barrier")
        le5 = a.label("e5skip")
        a(f"s_cmp_ge_u32 s{s_w}, 2\ns_cbranch_scc1 {le5}")
        a(f"v_cmp_le_u32 vcc, 36, v{v_tid}\ns_nop 1\nv_cndmask_b32 v{T+30}, 0, 1, vcc\nv_mul_u32_u24 v{T+31}, 36, v{T+30}\nv_sub_u32 v{T+31}, v{v_tid}, v{T+31}")
        a(f"v_min_u32 v{T+31}, 63, v{T+31}")
        a(f"v_lshlrev_b32 v{T}, 9, v{T+30}\nv_lshl_add_u32 v{T}, v{T+31}, 3, v{T}")
        for wv in range(8):
            a(f"ds_read_b64 v[{T+2+2*wv}:{T+3+2*wv}], v{T} offset:{L_RED + wv*1024}")
        a("s_waitcnt lgkmcnt(0)")
        a(f"v_add_f32 v{T+20}, v{T+2}, v{T+4}\nv_add_f32 v{T+21}, v{T+3}, v{T+5}")
        for wv in range(2, 8):
            a(f"v_add_f32 v{T+20}, v{T+20}, v{T+2+2*wv}\nv_add_f32 v{T+21}, v{T+21}, v{T+3+2*wv}")
        self.tag(5)
        a(f"s_mul_i32 s{S_T0}, s{s_h}, 576\ns_mul_i32 s{S_T0+1}, s{s_j}, 36\ns_add_u32 s{S_T0}, s{S_T0}, s{S_T0+1}")
        a(f"v_mul_u32_u24 v{T+24}, 288, v{T+30}\nv_add_u32 v{T+24}, v{T+24}, v{T+31}\nv_add_u32 v{T+24}, s{S_T0}, v{T+24}\nv_lshlrev_b32 v{T+24}, 4, v{T+24}")
        a(f"v_cmp_gt_u32 vcc, 72, v{v_tid}\ns_and_saveexec_b64 s[{S_SAVE}:{S_SAVE+1}], vcc")
        self.publish(T + 24, T + 20, E5)
        a(f"s_mov_b64 exec, s[{S_SAVE}:{S_SAVE+1}]")
        a(f"{le5}:")
        self.stamp(10)
        a(f"s_cmp_ge_u32 s{s_r}, 27\ns_cbranch_scc1 L_fin")
        a(f"s_cmp_ge_u32 s{s_r}, 18\ns_cbranch_scc1 L_reducer")
        self.ffn()
        a("s_branch L_fin")
        a("L_reducer:")
        self.reducer()
        a("L_fin:")
        self.flush_stamps()
        a("s_branch L_end")
        a("L_abort:")
        a(f"v_mov_b32 v{T}, 0\nv_mov_b32 v{T+1}, 0xdead\nglobal_store_dword v{T}, v{T+1}, s[{S_DBG}:{S_DBG+1}]")
        a("L_end:")
        a("s_endpgm")

    def qscale_bits(self):
        import struct, math
        return struct.unpack("<I", struct.pack("<f", (128 ** -0.5) * math.log2(math.e)))[0]

    def ffn_loads(self, t0, t1):
        a = self.a; T = V_T
        lab = a.label("noffn")
        a(f"s_cmp_ge_u32 s{s_r}, 18\ns_cbranch_scc1 {lab}")
        a(f"s_mul_i32 s{S_T0+8}, s{s_x}, 18\ns_add_u32 s{S_T0+8}, s{S_T0+8}, s{s_r}")
        if t0 < 18:
            a(f"s_mul_i32 s{S_T0+9}, s{s_w}, 72\nv_add_u32 v{T+80}, s{S_T0+9}, v{v_g}\nv_mul_u32_u24 v{T+80}, 9216, v{T+80}\nv_and_b32 v{T+81}, 3, v{v_c}\nv_lshl_add_u32 v{T+80}, v{T+81}, 4, v{T+80}\ns_lshl_b32 s{S_T0+9}, s{S_T0+8}, 6\nv_add_u32 v{T+80}, s{S_T0+9}, v{T+80}")
            a(f"v_cmp_gt_u32 s[{S_T0+10}:{S_T0+11}], 4, v{v_c}")
            a(f"v_cmp_gt_u32 s[{S_T0+12}:{S_T0+13}], 8, v{v_c}\ns_andn2_b64 s[{S_T0+12}:{S_T0+13}], s[{S_T0+12}:{S_T0+13}], s[{S_T0+10}:{S_T0+11}]")
            a(f"s_mov_b64 s[{S_SAVE}:{S_SAVE+1}], exec")
            for t in range(t0, min(t1, 18)):
                a(f"v_add_u32 v{T+81}, {t*4*9216}, v{T+80}")
                a(f"s_mov_b64 exec, s[{S_T0+10}:{S_T0+11}]\nglobal_load_dwordx4 v[{V_WGU+4*t}:{V_WGU+4*t+3}], v{T+81}, s[{S_WG}:{S_WG+1}] nt")
                a(f"s_mov_b64 exec, s[{S_T0+12}:{S_T0+13}]\nglobal_load_dwordx4 v[{V_WGU+4*t}:{V_WGU+4*t+3}], v{T+81}, s[{S_WU}:{S_WU+1}] nt")
                a(f"s_mov_b64 exec, s[{S_SAVE}:{S_SAVE+1}]")
        if t1 > 18:
            a(f"s_lshl_b32 s{S_T0+9}, s{S_T0+8}, 5\ns_lshl_b32 s{S_T0+10}, s{s_w}, 2\ns_add_u32 s{S_T0+9}, s{S_T0+9}, s{S_T0+10}\nv_add_u32 v{T+80}, s{S_T0+9}, v{v_g}\nv_mul_u32_u24 v{T+80}, 1152, v{T+80}\nv_lshl_add_u32 v{T+81}, v{v_c}, 4, v{T+80}")
            for cg in range(4):
                a(f"global_load_dwordx4 v[{V_WD+4*cg}:{V_WD+4*cg+3}], v{T+81}, s[{S_WD}:{S_WD+1}] offset:{256*cg} nt")
            a(f"v_and_b32 v{T+81}, 7, v{v_c}\nv_lshl_add_u32 v{T+81}, v{T+81}, 4, v{T+80}")
            a(f"global_load_dwordx4 v[{V_WD+16}:{V_WD+19}], v{T+81}, s[{S_WD}:{S_WD+1}] offset:1024 nt")
        a(f"{lab}:")

    def ffn(self):
        o = self.o; a = self.a; T = V_T
        self.ffn_loads(o.ffn_early, 23)
        self.tag(6)
        a(f"s_mul_i32 s{S_T0}, s{s_x}, {E5B_STRIDE}\nv_lshlrev_b32 v{T+24}, 4, v{v_tid}\nv_add_u32 v{T+24}, s{S_T0}, v{T+24}")
        a(f"v_min_u32 v{T+25}, 63, v{v_tid}\nv_lshlrev_b32 v{T+25}, 4, v{T+25}\nv_add_u32 v{T+25}, 8192, v{T+25}\nv_add_u32 v{T+25}, s{S_T0}, v{T+25}")
        self.gather([T + 24, T + 25], T + 32, E5BG, E5BL, pre=o.pre6, inter=2)
        self.stamp(11)
        a(f"v_lshlrev_b32 v{T}, 3, v{v_tid}\nds_write_b64 v{T}, v[{T+32}:{T+33}] offset:{L_XD}")
        lw = a.label("w0only")
        a(f"s_cmp_lg_u32 s{s_w}, 0\ns_cbranch_scc1 {lw}\nds_write_b64 v{T}, v[{T+36}:{T+37}] offset:{L_XD+4096}\n{lw}:")
        a("s_waitcnt lgkmcnt(0)\ns_barrier")
        a(f"v_lshrrev_b32 v{T}, 5, v{v_lane}\nv_mul_u32_u24 v{T}, 576, v{T}\nv_and_b32 v{T+1}, 31, v{v_lane}\nv_add_u32 v{T}, v{T}, v{T+1}\nv_lshlrev_b32 v{T}, 2, v{T}")
        HV = T + 4
        for k in range(18): a(f"ds_read_b32 v{HV+k}, v{T} offset:{L_XD + 128*k}")
        a(f"v_lshrrev_b32 v{T+1}, 3, v{v_c}\nv_mul_u32_u24 v{T+1}, 576, v{T+1}\ns_mul_i32 s{S_T0}, s{s_w}, 72\nv_add_u32 v{T+1}, s{S_T0}, v{T+1}\nv_add_u32 v{T+1}, v{T+1}, v{v_g}\nv_lshlrev_b32 v{T+1}, 2, v{T+1}")
        XV = T + 24
        a("s_waitcnt lgkmcnt(0)")
        for t in range(18): a(f"ds_read_b32 v{XV+t}, v{T+1} offset:{L_XD + 16*t}")
        SM = T + 22
        a(f"v_add_f32 v{SM}, v{HV}, v{HV+1}")
        for k in range(2, 18): a(f"v_add_f32 v{SM}, v{SM}, v{HV+k}")
        self.allreduce16(SM, T + 23); self.xrow16(SM, T + 23)
        a(f"v_mul_f32 v{SM}, {1.0/576:.9e}, v{SM}".replace("e-0", "e-"))
        for k in range(18): a(f"v_sub_f32 v{HV+k}, v{HV+k}, v{SM}")
        VV = T + 42
        a(f"v_mul_f32 v{VV}, v{HV}, v{HV}")
        for k in range(1, 18): a(f"v_fmac_f32 v{VV}, v{HV+k}, v{HV+k}")
        self.allreduce16(VV, T + 23); self.xrow16(VV, T + 23)
        a(f"v_mov_b32 v{T+23}, 0x3727c5ac\nv_mul_f32 v{VV}, {1.0/576:.9e}, v{VV}".replace("e-0", "e-") + f"\nv_add_f32 v{VV}, v{VV}, v{T+23}\nv_rsq_f32 v{VV}, v{VV}")
        def both(v, lo, hi):
            a(f"v_mov_b32 v{lo}, v{v}\nv_mov_b32 v{hi}, v{v}\ns_nop 1\nv_permlane32_swap_b32 v{lo}, v{hi}")
        both(SM, T + 43, T + 44); both(VV, T + 45, T + 46)
        a(f"v_cmp_gt_u32 vcc, 8, v{v_c}\ns_nop 1\nv_cndmask_b32 v{SM}, v{T+44}, v{T+43}, vcc\nv_cndmask_b32 v{VV}, v{T+46}, v{T+45}, vcc")
        ACC = T + 64
        for i in range(4): a(f"v_mov_b32 v{ACC+i}, 0")
        a("s_waitcnt lgkmcnt(0) vmcnt(5)")
        AO = T + 48
        for t in range(18):
            bb = AO + 4 * (t & 3)
            a(f"v_sub_f32 v{XV+t}, v{XV+t}, v{SM}\nv_mul_f32 v{XV+t}, v{XV+t}, v{VV}\nv_cvt_pk_bf16_f32 v{XV+t}, v{XV+t}, v{XV+t}")
            self.abuild(XV + t, bb)
            a("s_nop 1")
            a(f"v_mfma_f32_16x16x32_bf16 v[{ACC}:{ACC+3}], v[{bb}:{bb+3}], v[{V_WGU+4*t}:{V_WGU+4*t+3}], v[{ACC}:{ACC+3}]")
        a(f"s_lshl_b32 s{S_T0}, s{s_w}, 10\nv_add_u32 v{T+62}, s{S_T0}, v{8}")
        a.nop(8)
        a(f"ds_write_b128 v{T+62}, v[{ACC}:{ACC+3}] offset:{L_RED}")
        a("s_waitcnt lgkmcnt(0)\ns_barrier")
        lact = a.label("actskip")
        a(f"s_cmp_lg_u32 s{s_w}, 0\ns_cbranch_scc1 {lact}")
        a(f"v_lshrrev_b32 v{T}, 5, v{v_lane}\nv_lshlrev_b32 v{T}, 7, v{T}\nv_and_b32 v{T+1}, 31, v{v_lane}\nv_add_u32 v{T}, v{T}, v{T+1}\nv_lshlrev_b32 v{T}, 2, v{T}")
        for wv in range(8):
            a(f"ds_read_b32 v{T+2+wv}, v{T} offset:{L_RED + wv*1024}\nds_read_b32 v{T+10+wv}, v{T} offset:{L_RED + wv*1024 + 128}")
        a("s_waitcnt lgkmcnt(0)")
        for bb in (T + 2, T + 10):
            a(f"v_add_f32 v{bb}, v{bb}, v{bb+1}\nv_add_f32 v{bb+2}, v{bb+2}, v{bb+3}\nv_add_f32 v{bb+4}, v{bb+4}, v{bb+5}\nv_add_f32 v{bb+6}, v{bb+6}, v{bb+7}\nv_add_f32 v{bb}, v{bb}, v{bb+2}\nv_add_f32 v{bb+4}, v{bb+4}, v{bb+6}\nv_add_f32 v{bb}, v{bb}, v{bb+4}")
        a(f"v_mul_f32 v{T+20}, 0xbfb8aa3b, v{T+2}\nv_exp_f32 v{T+20}, v{T+20}\ns_nop 0\nv_add_f32 v{T+20}, 1.0, v{T+20}\nv_rcp_f32 v{T+20}, v{T+20}\ns_nop 0\nv_mul_f32 v{T+20}, v{T+20}, v{T+2}\nv_mul_f32 v{T+20}, v{T+20}, v{T+10}")
        a(f"v_cvt_pk_bf16_f32 v{T+20}, v{T+20}, v{T+20}")
        a(f"v_lshrrev_b32 v{T}, 5, v{v_lane}\nv_lshlrev_b32 v{T}, 2, v{T}\nv_and_b32 v{T+1}, 3, v{v_lane}\nv_add_u32 v{T}, v{T}, v{T+1}\nv_lshlrev_b32 v{T}, 3, v{T}\nv_bfe_u32 v{T+1}, v{v_lane}, 2, 3\nv_add_u32 v{T}, v{T}, v{T+1}\nv_lshlrev_b32 v{T}, 2, v{T}")
        a(f"ds_write_b32 v{T}, v{T+20} offset:{L_XD2}\ns_waitcnt lgkmcnt(0)")
        a(f"{lact}:")
        a("s_barrier")
        a(f"v_lshrrev_b32 v{T}, 3, v{v_c}\nv_lshl_add_u32 v{T}, v{T}, 2, v{v_g}\nv_lshlrev_b32 v{T}, 5, v{T}\ns_lshl_b32 s{S_T0}, s{s_w}, 2\nv_add_u32 v{T}, s{S_T0}, v{T}")
        a(f"ds_read_b32 v{T+1}, v{T} offset:{L_XD2}")
        DA = T + 24
        for i in range(20): a(f"v_mov_b32 v{DA+i}, 0")
        a("s_waitcnt lgkmcnt(0)")
        self.abuild(T + 1, T + 4)
        a("s_nop 1")
        for cg in range(5):
            a(f"v_mfma_f32_16x16x32_bf16 v[{DA+4*cg}:{DA+4*cg+3}], v[{T+4}:{T+7}], v[{V_WD+4*cg}:{V_WD+4*cg+3}], v[{DA+4*cg}:{DA+4*cg+3}]")
        a(f"v_lshrrev_b32 v{T}, 1, v{v_g}\nv_mul_u32_u24 v{T}, 576, v{T}\nv_lshl_add_u32 v{T}, v{v_c}, 3, v{T}\nv_and_b32 v{T+1}, 1, v{v_g}\nv_lshl_add_u32 v{T}, v{T+1}, 2, v{T}\nv_lshlrev_b32 v{T}, 2, v{T}\ns_mul_i32 s{S_T0}, s{s_w}, 4608\ns_add_u32 s{S_T0}, s{S_T0}, {L_CKV}\nv_add_u32 v{T}, s{S_T0}, v{T}")
        a.nop(6)
        for cg in range(4):
            a(f"ds_write_b128 v{T}, v[{DA+4*cg}:{DA+4*cg+3}] offset:{512*cg}")
        a(f"v_cmp_gt_u32 vcc, 8, v{v_c}\ns_and_saveexec_b64 s[{S_SAVE}:{S_SAVE+1}], vcc\nds_write_b128 v{T}, v[{DA+16}:{DA+19}] offset:2048\ns_mov_b64 exec, s[{S_SAVE}:{S_SAVE+1}]")
        a("s_waitcnt lgkmcnt(0)\ns_barrier")
        self.tag(7)
        a(f"s_mul_i32 s{S_T0+8}, s{s_x}, 18\ns_add_u32 s{S_T0+8}, s{S_T0+8}, s{s_r}\ns_lshl_b32 s{S_T0+8}, s{S_T0+8}, 7")
        def pub7(extra):
            a(f"v_add_u32 v{T+30}, {extra}, v{v_tid}\nv_lshlrev_b32 v{T}, 3, v{T+30}\nv_add_u32 v{T}, {L_CKV}, v{T}")
            for wv in range(8):
                a(f"ds_read_b64 v[{T+2+2*wv}:{T+3+2*wv}], v{T} offset:{wv*4608}")
            a("s_waitcnt lgkmcnt(0)")
            a(f"v_add_f32 v{T+20}, v{T+2}, v{T+4}\nv_add_f32 v{T+21}, v{T+3}, v{T+5}")
            for wv in range(2, 8):
                a(f"v_add_f32 v{T+20}, v{T+20}, v{T+2+2*wv}\nv_add_f32 v{T+21}, v{T+21}, v{T+3+2*wv}")
            a(f"v_lshrrev_b32 v{T+24}, 3, v{T+30}\nv_mul_u32_u24 v{T+24}, {144*128}, v{T+24}\nv_and_b32 v{T+25}, 7, v{T+30}\nv_lshl_add_u32 v{T+24}, v{T+25}, 4, v{T+24}\nv_add_u32 v{T+24}, s{S_T0+8}, v{T+24}")
            self.publish(T + 24, T + 20, E7)
            a("s_nop 1")
        pub7(0)
        l7 = a.label("p7")
        a(f"s_cmp_lg_u32 s{s_w}, 0\ns_cbranch_scc1 {l7}")
        pub7(512)
        a(f"{l7}:")
        self.stamp(12)

    def reducer(self):
        o = self.o; a = self.a; T = V_T
        self.tag(5)
        a(f"s_sub_u32 s{S_T0+8}, s{s_r}, 18\ns_lshl_b32 s{S_T0}, s{S_T0+8}, 6\ns_mul_i32 s{S_T0+1}, s{s_w}, 576\ns_add_u32 s{S_T0}, s{S_T0}, s{S_T0+1}\nv_add_u32 v{T+24}, s{S_T0}, v{v_lane}\nv_lshlrev_b32 v{T+24}, 4, v{T+24}")
        for k in range(1, 4): a(f"v_add_u32 v{T+24+k}, {k*8*576*16}, v{T+24}")
        a(f"v_add_u32 v{T+28}, s{S_T0+8}, s{S_T0+8}" if False else "")
        a(f"s_lshl_b32 s{S_T0+2}, s{S_T0+8}, 8\nv_lshlrev_b32 v{T+28}, 2, v{v_lane}\nv_add_u32 v{T+28}, s{S_T0+2}, v{T+28}\nglobal_load_dword v{T+29}, v{T+28}, s[{S_X}:{S_X+1}]")
        self.gather([T + 24 + k for k in range(4)], T + 32, E5, None, pre=o.pre5, inter=2)
        self.stamp(11)
        a(f"v_add_f32 v{T+20}, v{T+32}, v{T+36}\nv_add_f32 v{T+21}, v{T+33}, v{T+37}\nv_add_f32 v{T+22}, v{T+40}, v{T+44}\nv_add_f32 v{T+23}, v{T+41}, v{T+45}\nv_add_f32 v{T+20}, v{T+20}, v{T+22}\nv_add_f32 v{T+21}, v{T+21}, v{T+23}")
        a(f"s_lshl_b32 s{S_T0}, s{s_w}, 9\nv_lshlrev_b32 v{T}, 3, v{v_lane}\nv_add_u32 v{T+1}, s{S_T0}, v{T}\nds_write_b64 v{T+1}, v[{T+20}:{T+21}] offset:{L_RED}")
        a("s_waitcnt lgkmcnt(0)\ns_barrier")
        HH = T + 70
        lr = a.label("r0")
        a(f"s_cmp_lg_u32 s{s_w}, 0\ns_cbranch_scc1 {lr}")
        for wv in range(8):
            a(f"ds_read_b64 v[{T+2+2*wv}:{T+3+2*wv}], v{T} offset:{L_RED + wv*512}")
        a("s_waitcnt lgkmcnt(0)")
        a(f"v_lshlrev_b32 v{HH}, 16, v{T+29}\nv_and_b32 v{HH+1}, 0xffff0000, v{T+29}")
        for wv in range(8):
            a(f"v_add_f32 v{HH}, v{HH}, v{T+2+2*wv}\nv_add_f32 v{HH+1}, v{HH+1}, v{T+3+2*wv}")
        a(f"v_mov_b32 v{T+20}, v{HH}\nv_mov_b32 v{T+21}, v{HH+1}")
        self.tag(6)
        a(f"s_mul_i32 s{S_T0}, s{s_x}, {E5B_STRIDE}\ns_lshl_b32 s{S_T0+1}, s{S_T0+8}, 10\ns_add_u32 s{S_T0}, s{S_T0}, s{S_T0+1}\nv_lshlrev_b32 v{T+24}, 4, v{v_lane}\nv_add_u32 v{T+24}, s{S_T0}, v{T+24}")
        self.publish(T + 24, T + 20, E5BG, E5BL)
        self.dbg_dump(HH, 2, 2)
        lep = a.label("noep")
        a(f"s_cmp_lg_u32 s2, {18*8}\ns_cbranch_scc1 {lep}")
        a(f"s_add_u32 s{S_T0}, s{S_EP}, 16\ns_addc_u32 s{S_T0+1}, s{S_EP+1}, 0\nv_mov_b32 v{T+24}, s{S_T0}\nv_mov_b32 v{T+25}, s{S_T0+1}\nv_mov_b32 v{T+26}, 0")
        a(f"v_cmp_eq_u32 vcc, 0, v{v_lane}\ns_and_saveexec_b64 s[{S_SAVE}:{S_SAVE+1}], vcc\nglobal_store_dwordx2 v{T+26}, v[{T+24}:{T+25}], s[{S_WS}:{S_WS+1}] sc1\ns_mov_b64 exec, s[{S_SAVE}:{S_SAVE+1}]")
        a(f"{lep}:")
        a(f"v_lshlrev_b32 v{T}, 3, v{v_lane}\nds_write_b64 v{T}, v[{HH}:{HH+1}] offset:{L_XD}\ns_waitcnt lgkmcnt(0)")
        a(f"{lr}:")
        self.stamp(12)
        self.tag(7)
        a(f"s_lshl_b32 s{S_T0}, s{S_T0+8}, 3\ns_add_u32 s{S_T0}, s{S_T0}, s{s_x}\ns_mul_i32 s{S_T0}, s{S_T0}, {144*128}")
        a(f"v_lshlrev_b32 v{T+24}, 4, v{v_tid}\nv_add_u32 v{T+24}, s{S_T0}, v{T+24}\nv_add_u32 v{T+25}, 8192, v{T+24}")
        a(f"v_cmp_gt_u32 vcc, 128, v{v_tid}\nv_add_u32 v{T+26}, 16384, v{T+24}\ns_nop 0\nv_cndmask_b32 v{T+26}, v{T+24}, v{T+26}, vcc\nv_cndmask_b32 v{T+27}, 0, 1.0, vcc")
        self.gather([T + 24, T + 25, T + 26], T + 32, E7, None, pre=o.pre7, inter=2)
        self.stamp(13)
        a(f"v_add_f32 v{T+20}, v{T+32}, v{T+36}\nv_add_f32 v{T+21}, v{T+33}, v{T+37}\nv_fmac_f32 v{T+20}, v{T+40}, v{T+27}\nv_fmac_f32 v{T+21}, v{T+41}, v{T+27}")
        for v in (T + 20, T + 21):
            a(f"s_nop 1\nv_add_f32_dpp v{v}, v{v}, v{v} row_ror:8 row_mask:0xf bank_mask:0xf")
            self.xrow16(v, T + 22); self.xrow32(v, T + 22)
        a(f"s_lshl_b32 s{S_T0}, s{s_w}, 6\nv_and_b32 v{T}, 7, v{v_lane}\nv_lshlrev_b32 v{T}, 3, v{T}\nv_add_u32 v{T+1}, s{S_T0}, v{T}")
        a(f"v_cmp_gt_u32 vcc, 8, v{v_lane}\ns_and_saveexec_b64 s[{S_SAVE}:{S_SAVE+1}], vcc\nds_write_b64 v{T+1}, v[{T+20}:{T+21}] offset:{L_RED}\ns_mov_b64 exec, s[{S_SAVE}:{S_SAVE+1}]")
        a("s_waitcnt lgkmcnt(0)\ns_barrier")
        lf = a.label("fin0")
        a(f"s_cmp_lg_u32 s{s_w}, 0\ns_cbranch_scc1 {lf}")
        for wv in range(8):
            a(f"ds_read_b64 v[{T+2+2*wv}:{T+3+2*wv}], v{T} offset:{L_RED + wv*64}")
        a(f"s_lshl_b32 s{S_T0}, s{s_x}, 6\nv_add_u32 v{T+1}, s{S_T0}, v{T}\nds_read_b64 v[{T+20}:{T+21}], v{T+1} offset:{L_XD}")
        a("s_waitcnt lgkmcnt(0)")
        for wv in range(8):
            a(f"v_add_f32 v{T+20}, v{T+20}, v{T+2+2*wv}\nv_add_f32 v{T+21}, v{T+21}, v{T+3+2*wv}")
        a(f"v_cvt_pk_bf16_f32 v{T+22}, v{T+20}, v{T+21}")
        a(f"s_lshl_b32 s{S_T0}, s{S_T0+8}, 8\ns_lshl_b32 s{S_T0+1}, s{s_x}, 5\ns_add_u32 s{S_T0}, s{S_T0}, s{S_T0+1}\nv_lshrrev_b32 v{T+1}, 1, v{T}\nv_add_u32 v{T+1}, s{S_T0}, v{T+1}")
        a(f"v_cmp_gt_u32 vcc, 8, v{v_lane}\ns_and_saveexec_b64 s[{S_SAVE}:{S_SAVE+1}], vcc\nglobal_store_dword v{T+1}, v{T+22}, s[{S_OUT}:{S_OUT+1}]\ns_mov_b64 exec, s[{S_SAVE}:{S_SAVE+1}]")
        a(f"{lf}:")
        self.stamp(14)

def main():
    ap = argparse.ArgumentParser()
    ap.add_argument("-o", default="k.s")
    ap.add_argument("--debug", action="store_true")
    ap.add_argument("--stamps", action="store_true")
    ap.add_argument("--local", type=int, default=1)
    ap.add_argument("--fallback", type=int, default=24)
    ap.add_argument("--timeout", type=int, default=200000)
    ap.add_argument("--ffn_early", type=int, default=0)
    for i in range(1, 8): ap.add_argument(f"--pre{i}", type=int, default=0)
    o = ap.parse_args()
    g = Gen(o)
    g.build()
    name = KN + "_kernel"
    hdr = open("cdna_kernels/" + KN + ".s.ref").read().split("; Override launch")[0]
    s = hdr + f"; @launch grid=(256,1,1) block=(512,1,1) lds={LDS_BYTES}\n"
    s += f'.amdgcn_target "amdgcn-amd-amdhsa--gfx950"\n.text\n.globl {name}\n.p2align 8\n.type {name},@function\n{name}:\n'
    s += g.a.text()
    s += f"""
.section .rodata,"a"
.p2align 6
.amdhsa_kernel {name}
  .amdhsa_next_free_vgpr 256
  .amdhsa_next_free_sgpr 102
  .amdhsa_accum_offset 256
  .amdhsa_group_segment_fixed_size 0
  .amdhsa_kernarg_size 104
  .amdhsa_user_sgpr_count 2
  .amdhsa_user_sgpr_kernarg_segment_ptr 1
  .amdhsa_system_sgpr_workgroup_id_x 1
.end_amdhsa_kernel
"""
    open(o.o, "w").write(s)

main()
```
